```python
import torch

def _softmax(x, axis=-1):
    return torch.softmax(x, dim=axis)
def _gelu(x):
    return torch.nn.functional.gelu(x, approximate="tanh")
def _silu(x):
    return torch.nn.functional.silu(x)
def _sigmoid(x):
    return torch.sigmoid(x)
def _layernorm(x, axis=-1, eps=1e-5):
    m = x.mean(dim=axis, keepdim=True)
    v = x.var(dim=axis, keepdim=True, unbiased=False)
    return (x - m) / torch.sqrt(v + eps)
def _scatter_add(tgt, idx, src, axis=0):
    return tgt.clone().index_add_(axis, idx, src)
def _segment_sum(src, seg, n):
    out = torch.zeros((n,) + src.shape[1:], dtype=src.dtype)
    return out.index_add_(0, seg, src)
def _pad(x, pw):
    flat = tuple(v for pair in reversed(pw) for v in pair)
    return torch.nn.functional.pad(x, flat)

kernel_name = 'concat_heads__linear_kernel_hedgehog__ssm_conv_s4d__prompt'

def setup_inputs():

    _w = (lambda a: (lambda t: t.to(torch.bfloat16) if t.is_floating_point() else t)(torch.as_tensor(a)))
    def _A_setup():
        B, S, D, H = 1, 2048, 640, 32
        Dh = D // H
        return {
            "x": _w((lambda *s: torch.randn(*s, dtype=torch.bfloat16) * 0.4)(B, S, D)),
            "wqkv": _w((lambda *s: torch.randn(*s, dtype=torch.bfloat16) * 0.4)(D, 3 * D)),
            "w_phi": _w((lambda *s: torch.randn(*s, dtype=torch.bfloat16) * 0.4)(H, Dh, Dh) * (Dh ** -0.5)),
            "wo": _w((lambda *s: torch.randn(*s, dtype=torch.bfloat16) * 0.05)(D, D)),
        }
    _A_in = _A_setup()

    def _B_setup():
        Bsz, L, D, N = 1, 2048, 640, 128
        return {
            "u": _w((lambda *s: torch.randn(*s, dtype=torch.bfloat16) * 0.05)(Bsz, L, D)),
            "log_A_real": _w((lambda *s: torch.randn(*s, dtype=torch.bfloat16) * 3.2)(D, N) * 0.5),
            "A_imag": _w((lambda *s: torch.randn(*s, dtype=torch.bfloat16) * 0.2)(D, N) * 3.14),
            "C_real": _w((lambda *s: torch.randn(*s, dtype=torch.bfloat16) * 3.2)(D, N) / N ** 0.5),
            "C_imag": _w((lambda *s: torch.randn(*s, dtype=torch.bfloat16) * 3.2)(D, N) / N ** 0.5),
            "log_dt": _w((lambda *s: torch.randn(*s, dtype=torch.bfloat16) * 0.2)(D) * 0.5 - 4.0),
            "D_skip": _w((lambda *s: torch.randn(*s, dtype=torch.bfloat16) * 0.4)(D)),
        }
    _B_in = _B_setup()

    return {
        "A_x": _A_in["x"],
        "A_wqkv": _A_in["wqkv"],
        "A_w_phi": _A_in["w_phi"],
        "A_wo": _A_in["wo"],
        "B_u": _B_in["u"],
        "B_log_A_real": _B_in["log_A_real"],
        "B_A_imag": _B_in["A_imag"],
        "B_C_real": _B_in["C_real"],
        "B_C_imag": _B_in["C_imag"],
        "B_log_dt": _B_in["log_dt"],
        "B_D_skip": _B_in["D_skip"],
    }

def reference(A_x, A_wqkv, A_w_phi, A_wo, B_u, B_log_A_real, B_A_imag, B_C_real, B_C_imag, B_log_dt, B_D_skip):
    def _A_ref(x, wqkv, w_phi, wo):
        B, S, D = x.shape
        H = 32; Dh = D // H
        qkv = (lambda x, *d: x.permute(*d))((x @ wqkv).reshape(B, S, 3, H, Dh), 2, 0, 3, 1, 4)
        q, k, v = qkv[0], qkv[1], qkv[2]
        pq = torch.einsum("bhsd,hdf->bhsf", q, w_phi)
        pk = torch.einsum("bhsd,hdf->bhsf", k, w_phi)
        phi_q = torch.concatenate([_softmax(pq, axis=-1), _softmax(-pq, axis=-1)], axis=-1)
        phi_k = torch.concatenate([_softmax(pk, axis=-1), _softmax(-pk, axis=-1)], axis=-1)
        kv = torch.einsum("bhsf,bhsd->bhfd", phi_k, v)
        z  = torch.einsum("bhsf->bhf", phi_k)
        num = torch.einsum("bhqf,bhfd->bhqd", phi_q, kv)
        den = torch.einsum("bhqf,bhf->bhq", phi_q, z)[..., None] + 1e-6
        o = num / den
        return (lambda x, *d: x.permute(*d))(o, 0, 2, 1, 3).reshape(B, S, D) @ wo

    def _B_ref(u, log_A_real, A_imag, C_real, C_imag, log_dt, D_skip):
        L = u.shape[1]
        dt = torch.exp(log_dt)
        A = -torch.exp(log_A_real) + 1j * A_imag
        C = (C_real + 1j * C_imag) * dt[:, None]
        pos = (lambda x, dt: x.to(dt))(torch.arange(L), log_dt.dtype)
        P = torch.exp((A * dt[:, None])[:, :, None] * pos[None, None, :])
        K = 2.0 * torch.einsum("dn,dnl->dl", C, P).real
        L2 = 2 * L
        u_t = (lambda x, *d: x.permute(*d))(u, 0, 2, 1)
        Kf = (lambda x, *a, **k: torch.fft.rfft(x.float(), *a, **k))(K, L2)
        Uf = (lambda x, *a, **k: torch.fft.rfft(x.float(), *a, **k))(u_t, L2)
        y = (lambda x, *a, **k: torch.fft.irfft(x, *a, **k).to(torch.bfloat16))(Uf * Kf[None, :, :], L2)[:, :, :L]
        y = (lambda x, *d: x.permute(*d))(y, 0, 2, 1)
        return y + u * D_skip[None, None, :]

    a = _A_ref(A_x, A_wqkv, A_w_phi, A_wo)
    b = _B_ref(B_u, B_log_A_real, B_A_imag, B_C_real, B_C_imag, B_log_dt, B_D_skip)
    return torch.concatenate([a, b], axis=-1)
```

```python
import re, copy

TRANS = ('v_exp_f32', 'v_log_f32', 'v_rcp_f32', 'v_rsq_f32', 'v_sqrt_f32', 'v_sin_f32', 'v_cos_f32')


def v(i, n=1):
    return 'v%d' % i if n == 1 else 'v[%d:%d]' % (i, i + n - 1)


def a(i, n=1):
    return 'a%d' % i if n == 1 else 'a[%d:%d]' % (i, i + n - 1)


def s(i, n=1):
    return 's%d' % i if n == 1 else 's[%d:%d]' % (i, i + n - 1)


def split_ops(t):
    out, depth, cur = [], 0, ''
    for ch in t:
        if ch in '[(':
            depth += 1
        if ch in '])':
            depth -= 1
        if ch == ',' and depth == 0:
            out.append(cur.strip())
            cur = ''
        else:
            cur += ch
    if cur.strip():
        out.append(cur.strip())
    return out


_R1 = re.compile(r'^-?(?:abs\()?\|?([vas])(\d+)\)?\|?$')
_RN = re.compile(r'^-?([vas])\[(\d+):(\d+)\]$')


def regs_of(op):
    op = op.strip()
    tok = op.split()[0] if op else ''
    m = _R1.match(tok)
    if m:
        return [m.group(1) + m.group(2)]
    m = _RN.match(tok)
    if m:
        return [m.group(1) + str(i) for i in range(int(m.group(2)), int(m.group(3)) + 1)]
    if tok in ('vcc', 'exec', 'm0'):
        return [tok]
    if tok in ('vcc_lo', 'vcc_hi'):
        return ['vcc']
    if tok in ('exec_lo', 'exec_hi'):
        return ['exec']
    return []


class I:
    def __init__(self, text, **meta):
        self.text = text.strip()
        self.meta = meta
        self.defs, self.uses = [], []
        self.srcC = []
        self.srcAB = []
        t = self.text
        if t.endswith(':'):
            self.kind, self.mn = 'label', t
            return
        if t.startswith('.') or t.startswith(';'):
            self.kind, self.mn = 'dir', t
            return
        if t.startswith('@'):
            self.kind, self.mn = t[1:], t
            return
        sp = t.split(None, 1)
        mn = sp[0]
        self.mn = mn
        ops = split_ops(sp[1]) if len(sp) > 1 else []
        R = [regs_of(o) for o in ops]
        flat = lambda L: [r for x in L for r in x]
        if mn.startswith('v_mfma'):
            self.kind = 'mfma8' if '32x32x16' in mn else ('mfma4' if '16x16x32' in mn else None)
            assert self.kind, mn
            self.defs = R[0]
            self.srcAB = R[1] + R[2]
            self.srcC = R[3]
            self.uses = R[1] + R[2] + R[3]
        elif mn.startswith('ds_read') or mn.startswith('ds_bpermute'):
            self.kind = 'dsr'
            self.defs = R[0]
            self.uses = flat(R[1:])
        elif mn.startswith('ds_'):
            self.kind = 'dsw'
            self.uses = flat(R)
        elif mn.startswith('buffer_load') or mn.startswith('global_load'):
            if re.search(r'\blds\b', t):
                self.kind = 'dma'
                self.uses = flat(R) + ['m0']
            else:
                self.kind = 'vml'
                self.defs = R[0]
                self.uses = flat(R[1:])
        elif mn.startswith('buffer_store') or mn.startswith('global_store'):
            self.kind = 'vms'
            self.uses = flat(R)
            self.wide = ('x3' in mn or 'x4' in mn)
            self.data = R[0] if mn.startswith('buffer') else R[1]
        elif mn.startswith('buffer_atomic') or mn.startswith('global_atomic'):
            self.kind = 'vms'
            self.uses = flat(R)
            self.wide = False
            if re.search(r'\bsc0\b', t):
                self.kind = 'vml'
                self.defs = R[0]
        elif mn.startswith('s_load') or mn.startswith('s_buffer_load') or mn in ('s_memtime', 's_memrealtime'):
            self.kind = 'smem'
            self.defs = R[0]
            self.uses = flat(R[1:])
        elif mn == 's_waitcnt':
            self.kind = 'wait'
        elif mn == 's_nop':
            self.kind = 'nop'
            self.n = int(ops[0], 0) + 1
        elif mn == 's_barrier':
            self.kind = 'bar'
        elif mn.startswith('s_cbranch') or mn in ('s_branch', 's_endpgm', 's_setpc_b64', 's_swappc_b64'):
            self.kind = 'br'
            self.uses = flat(R)
        elif mn.startswith('s_cmp') or mn in ('s_setprio', 's_sleep', 's_bitcmp0_b32', 's_bitcmp1_b32'):
            self.kind = 'salu'
            self.uses = flat(R)
        elif mn.startswith('s_'):
            self.kind = 'salu'
            self.defs = R[0]
            self.uses = flat(R[1:])
            if mn in ('s_addk_i32', 's_mulk_i32'):
                self.uses += R[0]
            if 'saveexec' in mn:
                self.defs = self.defs + ['exec']
                self.uses += ['exec']
        elif mn.startswith('v_'):
            base = mn.replace('_e32', '').replace('_e64', '').replace('_dpp', '')
            self.kind = 'trans' if base in TRANS else 'valu'
            if base.startswith('v_cmp'):
                self.defs = R[0]
                self.uses = flat(R[1:])
            elif base.startswith('v_permlane') and 'swap' in base:
                self.defs = R[0] + R[1]
                self.uses = R[0] + R[1]
                self.perml = True
            elif base in ('v_add_co_u32', 'v_sub_co_u32', 'v_addc_co_u32'):
                self.defs = R[0] + R[1]
                self.uses = flat(R[2:])
            else:
                self.defs = R[0]
                self.uses = flat(R[1:])
                if base in ('v_fmac_f32', 'v_pk_fmac_f16', 'v_dot2c_f32_bf16', 'v_writelane_b32'):
                    self.uses += R[0]
                if base == 'v_cndmask_b32' and len(ops) == 3:
                    self.uses += ['vcc']
                if 'dpp' in mn or 'row_' in t or 'quad_perm' in t:
                    self.dpp = True
                    self.uses += R[0]
            self.rdlane = base in ('v_readfirstlane_b32', 'v_readlane_b32')
        else:
            raise ValueError('unknown instr: ' + t)

    def size(self):
        return self.meta.get('size', 8)

    def __repr__(self):
        return self.text


class State:
    def __init__(self):
        self.pos = 0
        self.w = {}
        self.cread = {}
        self.sdata = {}
        self.lg = []
        self.vm = []
        self.mfD = {}


def need_states(ins, st):
    need = 0

    def req(p, n):
        nonlocal need
        need = max(need, n - (st.pos - p - 1))

    k = ins.kind
    isvalu = k in ('valu', 'trans')
    ismf = k in ('mfma4', 'mfma8')
    ismem = k in ('dsr', 'dsw', 'vml', 'vms', 'dma')
    for r in ins.uses:
        if r not in st.w:
            continue
        p, wk = st.w[r]
        if wk in ('valu', 'trans'):
            if r[0] in 'va' and r not in ('vcc',):
                if ismf:
                    req(p, 2)
                if isvalu and getattr(ins, 'rdlane', False):
                    req(p, 1)
                if isvalu and getattr(ins, 'dpp', False):
                    req(p, 2)
                if isvalu and getattr(ins, 'perml', False):
                    req(p, 2)
                if wk == 'trans' and k == 'valu':
                    req(p, 1)
                if wk == 'trans' and ismem:
                    req(p, 1)
            else:
                if isvalu:
                    req(p, 4 if getattr(ins, 'rdlane', False) else 2)
                if k in ('vml', 'vms', 'dma'):
                    req(p, 5)
                if k in ('salu', 'br', 'smem'):
                    req(p, 1)
        elif wk in ('mfma4', 'mfma8'):
            n = 8 if wk == 'mfma4' else 12
            if ismf:
                if r in ins.srcAB:
                    req(p, n)
                if r in ins.srcC:
                    if not (k == wk and tuple(ins.srcC) == st.mfD.get(r)):
                        req(p, n - 2)
            else:
                req(p, n)
        elif wk == 'salu':
            if r == 'm0' and k == 'dma':
                req(p, 1)
    for r in ins.defs:
        if r in st.w:
            p, wk = st.w[r]
            if wk in ('mfma4', 'mfma8') and not ismf:
                req(p, 8 if wk == 'mfma4' else 12)
            if wk in ('mfma4', 'mfma8') and ismf and r not in ins.srcC:
                req(p, 8 if wk == 'mfma4' else 12)
        if isvalu and r in st.cread:
            p, ps = st.cread[r]
            req(p, 3 if ps == 4 else 7)
        if r in st.sdata and (isvalu or k in ('dsr', 'vml') or ismf):
            req(st.sdata[r], 2)
    return max(need, 0)


def need_waits(ins, st):
    lg = vm = None
    touch = set(ins.uses) | set(ins.defs)
    for i, (d, kind) in enumerate(st.lg):
        if d & touch:
            n = len(st.lg) - 1 - i
            if kind == 'smem' or any(kk == 'smem' for _, kk in st.lg):
                n = 0
            lg = n if lg is None else min(lg, n)
    for i, (d, tok) in enumerate(st.vm):
        if d & touch:
            n = len(st.vm) - 1 - i
            vm = n if vm is None else min(vm, n)
    if ins.kind == 'waittok':
        toks = ins.meta['toks']
        for i, (d, tok) in enumerate(st.vm):
            if tok in toks:
                n = len(st.vm) - 1 - i
                vm = n if vm is None else min(vm, n)
    if ins.kind == 'waitlg':
        if st.lg:
            lg = 0
    if ins.kind == 'waitvm':
        if st.vm:
            vm = 0
    if lg is not None:
        lg = min(lg, 15)
    if vm is not None:
        vm = min(vm, 63)
    return lg, vm


def apply_wait(st, lg, vm):
    if lg is not None:
        st.lg = st.lg[len(st.lg) - lg:] if lg < len(st.lg) and lg > 0 else ([] if lg == 0 else st.lg)
    if vm is not None:
        st.vm = st.vm[len(st.vm) - vm:] if vm < len(st.vm) and vm > 0 else ([] if vm == 0 else st.vm)


def commit(ins, st):
    k = ins.kind
    if k in ('label', 'dir', 'waittok', 'waitlg', 'waitvm', 'loop', 'endloop', 'reset'):
        if k == 'reset':
            st.lg, st.vm = [], []
        return
    if k == 'wait':
        m = re.search(r'lgkmcnt\((\d+)\)', ins.text)
        lg = int(m.group(1)) if m else None
        m = re.search(r'vmcnt\((\d+)\)', ins.text)
        vm = int(m.group(1)) if m else None
        apply_wait(st, lg, vm)
    if k == 'nop':
        st.pos += ins.n
        return
    for r in ins.defs:
        st.w[r] = (st.pos, k)
        if k in ('mfma4', 'mfma8'):
            st.mfD[r] = tuple(ins.defs)
        else:
            st.mfD.pop(r, None)
    if k in ('mfma4', 'mfma8'):
        for r in ins.srcC:
            st.cread[r] = (st.pos, 4 if k == 'mfma4' else 8)
    if k == 'vms' and getattr(ins, 'wide', False):
        for r in ins.data:
            st.sdata[r] = st.pos
    if k in ('dsr', 'dsw'):
        st.lg.append((set(ins.defs), 'ds'))
    if k == 'smem':
        st.lg.append((set(ins.defs), 'smem'))
    if k in ('vml', 'vms', 'dma'):
        st.vm.append((set(ins.defs), ins.meta.get('tok')))
        assert len(st.vm) <= 63 or ins.meta.get('ovf_ok'), 'vmcnt overflow at ' + ins.text
    st.pos += 1


def run_seq(seq, st, forced=None):
    res = []
    for idx, ins in enumerate(seq):
        lg, vm = need_waits(ins, st)
        fn = 0
        if forced:
            flg, fvm, fn = forced[idx]
            if flg is not None:
                lg = flg if lg is None else min(lg, flg)
            if fvm is not None:
                vm = fvm if vm is None else min(vm, fvm)
        if lg is not None or vm is not None:
            apply_wait(st, lg, vm)
            st.pos += 1
        n = need_states(ins, st) if ins.kind not in ('label', 'dir', 'waittok', 'waitlg', 'waitvm', 'reset') else 0
        n = max(n, fn)
        st.pos += n
        commit(ins, st)
        res.append((lg, vm, n))
    return res


def finalize(ins_list):
    out = []
    st = State()

    def emit(seq, res):
        for ins, (lg, vm, n) in zip(seq, res):
            if lg is not None or vm is not None:
                w = []
                if vm is not None:
                    w.append('vmcnt(%d)' % vm)
                if lg is not None:
                    w.append('lgkmcnt(%d)' % lg)
                out.append('  s_waitcnt ' + ' '.join(w))
            while n > 0:
                m = min(n, 16)
                out.append('  s_nop %d' % (m - 1))
                n -= m
            if ins.kind in ('waittok', 'waitlg', 'waitvm', 'reset'):
                continue
            out.append(ins.text if ins.kind in ('label', 'dir') else '  ' + ins.text)

    def process(seq, st):
        i = 0
        fseq, fres = [], []
        while i < len(seq):
            if seq[i].kind == 'loop':
                depth, j = 1, i + 1
                while depth:
                    if seq[j].kind == 'loop':
                        depth += 1
                    if seq[j].kind == 'endloop':
                        depth -= 1
                    j += 1
                body = seq[i + 1:j - 1]
                flat = [x for x in body if x.kind not in ('loop', 'endloop')]
                forced = None
                for it in range(6):
                    s1 = copy.deepcopy(st)
                    _, r1 = process_forced(body, s1, forced)
                    _, r2 = process_forced(body, s1, forced)
                    merged = [(mn(x[0], y[0]), mn(x[1], y[1]), max(x[2], y[2])) for x, y in zip(r1, r2)]
                    if merged == forced:
                        break
                    forced = merged
                else:
                    raise RuntimeError('loop did not converge')
                process_forced(body, st, forced)
                process_forced(body, st, forced)
                fseq += flat
                fres += forced
                i = j
            else:
                j = i
                while j < len(seq) and seq[j].kind != 'loop':
                    j += 1
                r = run_seq(seq[i:j], st)
                fseq += seq[i:j]
                fres += r
                i = j
        return fseq, fres

    def mn(x, y):
        if x is None:
            return y
        if y is None:
            return x
        return min(x, y)

    def process_forced(body, st, forced):
        flat_idx = 0
        res = []
        i = 0
        while i < len(body):
            if body[i].kind == 'loop':
                depth, j = 1, i + 1
                while depth:
                    if body[j].kind == 'loop':
                        depth += 1
                    if body[j].kind == 'endloop':
                        depth -= 1
                    j += 1
                inner = body[i + 1:j - 1]
                nflat = len([x for x in inner if x.kind not in ('loop', 'endloop')])
                f = forced[flat_idx:flat_idx + nflat] if forced else None
                _, ra = process_forced(inner, st, f)
                _, rb = process_forced(inner, st, f)
                res += [(mn(x[0], y[0]), mn(x[1], y[1]), max(x[2], y[2])) for x, y in zip(ra, rb)]
                flat_idx += nflat
                i = j
            else:
                j = i
                while j < len(body) and body[j].kind != 'loop':
                    j += 1
                f = forced[flat_idx:flat_idx + (j - i)] if forced else None
                res += run_seq(body[i:j], st, f)
                flat_idx += j - i
                i = j
        return None, res

    fseq, fres = process(ins_list, st)
    emit(fseq, fres)
    return out


class Asm:
    def __init__(self):
        self.ins = []

    def __call__(self, text, **meta):
        for line in text.split('\n'):
            line = line.split(';')[0].strip() if not line.strip().startswith(';') else ''
            if line:
                self.ins.append(I(line, **meta))
        return self

    def label(self, name):
        self.ins.append(I(name + ':'))

    def waittok(self, *toks):
        self.ins.append(I('@waittok', toks=set(toks)))

    def waitlg(self):
        self.ins.append(I('@waitlg'))

    def waitvm(self):
        self.ins.append(I('@waitvm'))

    def reset(self):
        self.ins.append(I('@reset'))

    def loop(self):
        self.ins.append(I('@loop'))

    def endloop(self):
        self.ins.append(I('@endloop'))

    def extend(self, other):
        self.ins += other.ins if isinstance(other, Asm) else other

    def barrier(self):
        self.waitlg()
        self('s_barrier')


def cost(ins):
    k = ins.kind
    if k == 'mfma4':
        return 8
    if k == 'mfma8':
        return 8
    if k == 'trans':
        return 8
    if k == 'valu':
        return 4
    if k in ('label', 'dir', 'waittok', 'waitlg', 'waitvm', 'reset'):
        return 0
    return 2


def merge(primary, secondary, start=0.0, end=1.0):
    P = primary.ins if isinstance(primary, Asm) else primary
    S = secondary.ins if isinstance(secondary, Asm) else secondary
    nm = sum(1 for x in P if x.kind in ('mfma4', 'mfma8'))
    totS = sum(cost(x) for x in S)
    out = []
    si = 0
    done = 0.0
    seen = 0
    st = State()

    def push(x):
        lg, vm = need_waits(x, st)
        if lg is not None or vm is not None:
            apply_wait(st, lg, vm)
            st.pos += 1
        if x.kind not in ('label', 'dir', 'waittok', 'waitlg', 'waitvm', 'reset'):
            st.pos += need_states(x, st)
        commit(x, st)
        out.append(x)

    for x in P:
        push(x)
        if x.kind in ('mfma4', 'mfma8'):
            seen += 1
            frac = (seen / nm - start) / (end - start)
            target = min(max(frac, 0.0), 1.0) * totS
            while si < len(S) and done < target:
                y = S[si]
                if y.kind not in ('label', 'dir', 'waittok', 'waitlg', 'waitvm', 'reset') and need_states(y, st) > 0 and seen < nm:
                    break
                push(y)
                done += cost(y)
                si += 1
    while si < len(S):
        push(S[si])
        si += 1
    r = Asm()
    r.ins = out
    return r
```

```python
from asmlib import *

LOG2E = 0x3fb8aa3b
NLOG2E = 0xbfb8aa3b
INV2PI = 0x3e22f983

S_X, S_W, S_PHI, S_WO, S_U, S_LA, S_AI, S_CR, S_CI, S_LDT, S_DSK, S_OUT, S_DBG, S_WS = 16, 18, 20, 22, 24, 26, 28, 30, 32, 34, 36, 38, 40, 42
S_WAVE = 4

RAW = 0
KIMG = 32784
KSTR = 8448
R0OFF = 4216
SCR = KIMG + 8 * KSTR
SCRW = 58 * 272
CROW = SCR + 4 * SCRW
UIMG = SCR
UCP = 4864
UCH = 9760
assert CROW + 272 <= 163840
A_ROWS = list(range(8)) + [256, 258, 260, 262, 264, 512, 516, 520, 768, 772, 776, 1024, 1032, 1280, 1288, 1536, 1544, 1792, 1800]
H0 = list(range(8)) + [1280, 1288, 0, 1536, 1544, 0, 1792, 1800]
H1 = [256, 256, 258, 260, 260, 260, 262, 264, 512, 516, 520, 768, 772, 776, 1024, 1032]


def b_table():
    T = []
    t = []
    for l in range(64):
        i, hh = l & 31, l >> 5
        q, h, r = i >> 3, (i >> 2) & 1, i & 3
        aval = (H1 if h else H0)[4 * q + r]
        t.append(A_ROWS.index(aval) * 272 + hh * 16)
    T.append(t)
    T.append([(26 + (l & 31)) * 272 + (l >> 5) * 16 for l in range(64)])
    T.append([4080 - 512 * (l >> 5) - 16 * (l & 31) for l in range(64)])
    T.append([4080 - 512 * (4 if (l >> 5) else 7) - 16 * (l & 31) for l in range(64)])
    t = []
    for l in range(64):
        i, hh = l & 31, l >> 5
        c0 = i & 1
        X = 2047 if c0 else 2049
        x0 = X - (1024 + 2 * i + 1 - 8 * hh)
        t.append((0 if c0 else R0OFF) + 2 * x0)
    T.append(t)
    T.append([((l >> 4) & 1) * UCP + (l >> 5) * 16 for l in range(64)])
    T.append([((l >> 4) & 1) * UCP + (l >> 5) * 16 + 144 * (17 + (l & 15)) for l in range(64)])
    T.append([16 * (16 * (l >> 4) + 4 * (l & 3) + ((l >> 2) & 3)) for l in range(64)])
    T.append([(l & 3) * UCH + 144 + 2 * (16 * (l >> 4) + 4 * ((l >> 2) & 3)) for l in range(64)])
    T.append([(l >> 4) * UCH + ((l >> 3) & 1) * UCP + (l & 7) * 16 for l in range(64)])
    T.append([2 * (64 * (l & 15) + 8 * (l >> 5) + (0 if (l >> 4) & 1 else 4)) for l in range(64)])
    T.append([((l >> 2) & 3) * (KSTR + 64) + 2 * (16 * (l >> 4) + 4 * (l & 3)) for l in range(64)])
    return T


def cmul(A, d, x, y, t):
    A('v_pk_mul_f32 %s, %s, %s op_sel:[0,0] op_sel_hi:[1,0]' % (v(t, 2), v(x, 2), v(y, 2)))
    A('v_pk_fma_f32 %s, %s, %s, %s op_sel:[1,1,0] op_sel_hi:[0,1,1] neg_lo:[1,0,0]' % (v(d, 2), v(x, 2), v(y, 2), v(t, 2)))


def gen_B(A, tbl_sbase, tbl_off):
    S_CG = 5
    SU = 44
    SO = 48
    sT0, sT1, sT2, sT3, sLD0, sLD1, sDS0, sDS1, sCNT, sCNT2, sM_E, sM_H, sM_EV = 52, 53, 54, 55, 56, 57, 58, 59, 60, 61, 62, 64, 66
    sKS = 68
    TB = 2
    nT = len(b_table())
    vAfr, vBfr, vK0, vK3, vCA, vCZ, vCB2, vUr, vUw, vUz, vYw, vFr = [TB + i for i in range(nT)]
    vP = 16
    vWr = 24; vDt = 25; vDsk = 26; vMask0 = 27; vT = 28; vT2 = 29; vOff = 30; vCB1 = 31
    vZr, vZi = 32, 33
    vC = 34; vW1 = 36; vW8 = 38; vG = 40; vW2 = 42; vW4 = 44; vW6 = 46; vX = 48; vY = 50; vTmp = 52; vTm2 = 54; vCG = 56; vE = 58; vPk = 60
    vAcc = 64
    vFrag = 96
    vCAc, vCB2c, vK0c, vK3c, vYc = 128, 129, 130, 131, 132

    A('v_lshlrev_b32 v1, 2, v0')
    for i in range(nT):
        A('global_load_dword %s, v1, %s offset:%d' % (v(TB + i), s(tbl_sbase, 2), tbl_off + 256 * i))
    A('s_lshl_b32 %s, %s, 3' % (s(sT0), s(S_CG)))
    A('s_add_u32 %s, %s, %s' % (s(sT0), s(sT0), s(S_WAVE)))
    A('s_lshl_b32 %s, %s, 8' % (s(sT1), s(sT0)))
    A('v_add_u32 %s, %s, v1' % (v(vOff), s(sT1)))
    for rho in range(2):
        for k, sb in enumerate((S_LA, S_AI, S_CR, S_CI)):
            A('global_load_dword %s, %s, %s offset:%d' % (v(vP + 4 * rho + k), v(vOff), s(sb, 2), 1024 * rho))
    A('s_lshl_b32 %s, %s, 1' % (s(sT1), s(sT0)))
    A('s_and_b32 %s, %s, 0xfffffffc' % (s(sT1), s(sT1)))
    A('s_add_u32 %s, %s, 8' % (s(sT2), s(sT1)))
    A('s_load_dword %s, %s, %s' % (s(sLD0), s(S_LDT, 2), s(sT1)))
    A('s_load_dword %s, %s, %s' % (s(sLD1), s(S_LDT, 2), s(sT2)))
    A('s_load_dword %s, %s, %s' % (s(sDS0), s(S_DSK, 2), s(sT1)))
    A('s_load_dword %s, %s, %s' % (s(sDS1), s(S_DSK, 2), s(sT2)))
    A('s_mov_b32 %s, %s' % (s(SU), s(S_U)))
    A('s_mov_b32 %s, %s' % (s(SU + 1), s(S_U + 1)))
    A('s_mov_b32 %s, %d' % (s(SU + 2), 2048 * 1280))
    A('s_mov_b32 %s, 0x20000' % s(SU + 3))
    A('s_mov_b32 %s, %s' % (s(SO), s(S_OUT)))
    A('s_mov_b32 %s, %s' % (s(SO + 1), s(S_OUT + 1)))
    A('s_mov_b32 %s, %d' % (s(SO + 2), 2048 * 2560))
    A('s_mov_b32 %s, 0x20000' % s(SO + 3))
    A('s_mov_b32 %s, 1280' % s(sT1))
    A('v_mul_lo_u32 %s, v0, %s' % (v(vT), s(sT1)))
    A('s_mul_i32 %s, %s, %d' % (s(sT2), s(S_WAVE), 512 * 1280))
    A('s_lshl_b32 %s, %s, 4' % (s(sT3), s(S_CG)))
    A('s_add_u32 %s, %s, %s' % (s(sT2), s(sT2), s(sT3)))
    A('s_lshl_b32 %s, %s, 13' % (s(sT3), s(S_WAVE)))
    A('s_add_u32 m0, %s, %d' % (s(sT3), RAW + 16))
    for i in range(8):
        A('buffer_load_dwordx4 %s, %s, %s offen lds' % (v(vT), s(SU, 4), s(sT2)), tok='raw')
        if i < 7:
            A('s_add_u32 %s, %s, %d' % (s(sT2), s(sT2), 64 * 1280))
            A('s_addk_i32 m0, 0x400')
    A('s_mov_b32 %s, 0' % s(sM_H)); A('s_mov_b32 %s, -1' % s(sM_H + 1))
    A('s_mov_b32 %s, 0x55555555' % s(sM_E)); A('s_mov_b32 %s, 0' % s(sM_E + 1))
    A('s_mov_b32 %s, 0x55555555' % s(sM_EV)); A('s_mov_b32 %s, 0x55555555' % s(sM_EV + 1))
    z = vFrag
    for i in range(4):
        A('v_mov_b32 %s, 0' % v(z + i))
    A('v_mov_b32 %s, 0x3f80' % v(vT2))
    A('v_add_u32 %s, %d, v1' % (v(vTmp), CROW))
    A('ds_write_b32 %s, %s' % (v(vTmp), v(vT2)))
    A('v_mov_b32 %s, 0' % v(vTmp + 1))
    A('ds_write_b128 %s, %s' % (v(vTmp + 1), v(z, 4)))
    A('v_lshlrev_b32 %s, 4, v0' % v(vTmp))
    A('v_add_u32 %s, %d, %s' % (v(vTm2), 8304 - 128, v(vTmp)))
    A('v_add_u32 %s, %d, %s' % (v(vTmp), 4096, v(vTmp)))
    A('v_cmp_gt_u32 vcc, 8, v0')
    A('v_cndmask_b32 %s, %s, %s, vcc' % (v(vTmp), v(vTm2), v(vTmp)))
    A('s_mul_i32 %s, %s, %d' % (s(sKS), s(S_WAVE), KSTR))
    A('s_add_u32 %s, %s, %d' % (s(sKS), s(sKS), KIMG))
    A('v_add_u32 %s, %s, %s' % (v(vTmp), s(sKS), v(vTmp)))
    A('s_mov_b64 exec, 0x1ffff')
    A('ds_write_b128 %s, %s' % (v(vTmp), v(z, 4)))
    A('ds_write_b128 %s, %s offset:%d' % (v(vTmp), v(z, 4), 4 * KSTR))
    A('s_mov_b64 exec, -1')
    A('s_mul_i32 %s, %s, %d' % (s(sT1), s(S_WAVE), SCRW))
    A('s_add_u32 %s, %s, %d' % (s(sT1), s(sT1), SCR))
    A('v_add_u32 %s, %s, v1' % (v(vWr), s(sT1)))
    A('v_add_u32 %s, %s, %s' % (v(vAfr), s(sT1), v(vAfr)))
    A('v_add_u32 %s, %s, %s' % (v(vBfr), s(sT1), v(vBfr)))
    A('v_and_b32 %s, 31, v0' % v(vT))
    A('v_lshrrev_b32 %s, 1, v0' % v(vT2))
    A('v_and_b32 %s, 16, %s' % (v(vT2), v(vT2)))
    A('v_add_u32 %s, %d, %s' % (v(vT2), CROW, v(vT2)))
    A('v_cmp_eq_u32 vcc, 0, %s' % v(vT))
    A('v_cndmask_b32 %s, %s, %s, vcc' % (v(vBfr), v(vBfr), v(vT2)))
    A('v_cmp_eq_u32 vcc, 0, v0')
    A('v_cndmask_b32 %s, 0, 1.0, vcc' % v(vMask0))
    A('v_add_u32 %s, %s, %s' % (v(vK0c), s(sKS), v(vK0)))
    A('v_add_u32 %s, %s, %s' % (v(vK3c), s(sKS), v(vK3)))
    A('s_and_b32 %s, %s, 1' % (s(sT1), s(S_WAVE)))
    A('s_lshl_b32 %s, %s, 4' % (s(sT1), s(sT1)))
    for r in (sLD0, sLD1, sDS0, sDS1):
        A('s_lshr_b32 %s, %s, %s' % (s(r), s(r), s(sT1)))
        A('s_lshl_b32 %s, %s, 16' % (s(r), s(r)))
    A.waittok()
    A('s_mov_b32 %s, 0' % s(sCNT))
    A('s_waitcnt vmcnt(8) lgkmcnt(0)')
    A.loop()
    A.label('B_kgen_ch')
    A('v_mov_b32 %s, %s' % (v(vDt), s(sLD0)))
    A('v_mul_f32 %s, 0x%x, %s' % (v(vDt), LOG2E, v(vDt)))
    A('v_exp_f32 %s, %s' % (v(vDt), v(vDt)))
    A('v_cvt_pk_bf16_f32 %s, %s, %s' % (v(vDt), v(vDt), v(vDt)))
    A('v_lshlrev_b32 %s, 16, %s' % (v(vDt), v(vDt)))
    A('v_mov_b32 %s, %s' % (v(vDsk), s(sDS0)))
    for i in range(16):
        A('v_mov_b32 %s, 0' % v(vAcc + i))
    A('s_mov_b32 %s, 0' % s(sCNT2))
    A.loop()
    A.label('B_kgen_pass')
    A('v_lshlrev_b32 %s, 16, %s' % (v(vE), v(vP)))
    A('v_mul_f32 %s, 0x%x, %s' % (v(vE), LOG2E, v(vE)))
    A('v_exp_f32 %s, %s' % (v(vE), v(vE)))
    A('v_lshlrev_b32 %s, 16, %s' % (v(vZi), v(vP + 1)))
    A('v_lshlrev_b32 %s, 16, %s' % (v(vC), v(vP + 2)))
    A('v_lshlrev_b32 %s, 16, %s' % (v(vC + 1), v(vP + 3)))
    A('v_cvt_pk_bf16_f32 %s, %s, %s' % (v(vE), v(vE), v(vE)))
    A('v_lshlrev_b32 %s, 16, %s' % (v(vE), v(vE)))
    A('v_mul_f32 %s, %s, %s' % (v(vZr), v(vE), v(vDt)))
    A('v_mul_f32 %s, %s, %s' % (v(vZi), v(vZi), v(vDt)))
    A('v_mul_f32 %s, 0x%x, %s' % (v(vZr), NLOG2E, v(vZr)))
    A('v_mul_f32 %s, 0x%x, %s' % (v(vZi), INV2PI, v(vZi)))
    A('v_mul_f32 %s, %s, %s' % (v(vC), v(vC), v(vDt)))
    A('v_mul_f32 %s, %s, %s' % (v(vC + 1), v(vC + 1), v(vDt)))
    A('v_add_f32 %s, %s, %s' % (v(vC), v(vC), v(vC)))
    A('v_add_f32 %s, %s, %s' % (v(vC + 1), v(vC + 1), v(vC + 1)))
    for i in range(4):
        A('v_lshrrev_b32 %s, 16, %s' % (v(vP + i), v(vP + i)))

    def direct(d, lit):
        if lit is None:
            A('v_exp_f32 %s, %s' % (v(vE), v(vZr)))
            A('v_fract_f32 %s, %s' % (v(vE + 1), v(vZi)))
        else:
            A('v_mul_f32 %s, 0x%x, %s' % (v(vE), lit, v(vZr)))
            A('v_mul_f32 %s, 0x%x, %s' % (v(vE + 1), lit, v(vZi)))
            A('v_exp_f32 %s, %s' % (v(vE), v(vE)))
            A('v_fract_f32 %s, %s' % (v(vE + 1), v(vE + 1)))
        A('v_cos_f32 %s, %s' % (v(d), v(vE + 1)))
        A('v_sin_f32 %s, %s' % (v(d + 1), v(vE + 1)))
        A('v_mul_f32 %s, %s, %s' % (v(d), v(d), v(vE)))
        A('v_mul_f32 %s, %s, %s' % (v(d + 1), v(d + 1), v(vE)))
    direct(vW1, None)
    direct(vW8, 0x41000000)
    direct(vG, 0x43800000)
    pk = [0]

    def putA(reg, aval):
        p = vPk + (pk[0] & 3); pk[0] += 1
        A('v_cvt_pk_bf16_f32 %s, %s, -%s' % (v(p), v(reg), v(reg + 1)))
        A('ds_write_b32 %s, %s offset:%d' % (v(vWr), v(p), A_ROWS.index(aval) * 272))

    def putB(reg, j):
        p = vPk + (pk[0] & 3); pk[0] += 1
        A('v_cvt_pk_bf16_f32 %s, %s, %s' % (v(p), v(reg), v(reg + 1)))
        A('ds_write_b32 %s, %s offset:%d' % (v(vWr), v(p), (26 + j) * 272))
    putB(vW8, 1)
    cur, oth = vX, vY
    cmul(A, cur, vW8, vW8, vTmp); putB(cur, 2)
    for j in range(3, 32):
        cmul(A, oth, cur, vW8, vTmp); putB(oth, j)
        cur, oth = oth, cur
    putA(vC, 0)
    cur, oth = vX, vY
    cmul(A, cur, vC, vW1, vTmp); putA(cur, 1)
    for e in range(2, 8):
        cmul(A, oth, cur, vW1, vTmp); putA(oth, e)
        cur, oth = oth, cur
    cmul(A, vW2, vW1, vW1, vTmp)
    cmul(A, vW4, vW2, vW2, vTmp)
    cmul(A, vW6, vW4, vW2, vTmp)
    cg, cg2 = vCG, vTm2
    cmul(A, cg, vC, vG, vTmp)
    for B in range(1, 8):
        putA(cg, 256 * B)
        ws = {1: [(2, vW2), (4, vW4), (6, vW6), (8, vW8)], 2: [(4, vW4), (8, vW8)], 3: [(4, vW4), (8, vW8)]}.get(B, [(8, vW8)])
        for k, (o, wreg) in enumerate(ws):
            d = vX if k & 1 else vY
            cmul(A, d, cg, wreg, vTmp); putA(d, 256 * B + o)
        if B < 7:
            cmul(A, cg2, cg, vG, vTmp)
            cg, cg2 = cg2, cg
    for st in range(8):
        f = vFrag + 8 * (st & 3)
        A('ds_read_b128 %s, %s offset:%d' % (v(f, 4), v(vAfr), 32 * st))
        A('ds_read_b128 %s, %s offset:%d' % (v(f + 4, 4), v(vBfr), 32 * st))
        if st >= 3:
            g = vFrag + 8 * ((st - 3) & 3)
            A('v_mfma_f32_32x32x16_bf16 %s, %s, %s, %s' % (v(vAcc, 16), v(g, 4), v(g + 4, 4), v(vAcc, 16)))
    for st in range(5, 8):
        g = vFrag + 8 * (st & 3)
        A('v_mfma_f32_32x32x16_bf16 %s, %s, %s, %s' % (v(vAcc, 16), v(g, 4), v(g + 4, 4), v(vAcc, 16)))
    A('s_add_u32 %s, %s, 1' % (s(sCNT2), s(sCNT2)))
    A('s_cmp_lt_u32 %s, 2' % s(sCNT2))
    A('s_cbranch_scc1 B_kgen_pass')
    A.endloop()
    D = vFrag
    A('v_fmac_f32 %s, %s, %s' % (v(vAcc), v(vDsk), v(vMask0)))

    def wr_slot(addr, off):
        A('ds_write_b128 %s, %s offset:%d' % (v(addr), v(D, 4), off))
        for k in range(4):
            A('ds_write_b32 %s, %s offset:%d' % (v(addr), v(D + k), off + R0OFF + 4 + 4 * k))
    for k in range(4):
        A('v_cvt_pk_bf16_f32 %s, %s, %s' % (v(D + k), v(vAcc + 7 - 2 * k), v(vAcc + 6 - 2 * k)))
    wr_slot(vK0c, 0)
    for sl in (1, 2):
        D = vFrag + 4 * sl
        x0, x1, x2 = vAcc + 5 + 3 * sl, vAcc + 6 + 3 * sl, vAcc + 7 + 3 * sl
        A('v_cndmask_b32 %s, %s, %s, %s' % (v(vX), v(x1), v(x2), s(sM_H, 2)))
        A('v_cndmask_b32 %s, %s, %s, %s' % (v(vX + 1), v(x1), v(x0), s(sM_E, 2)))
        A('v_cndmask_b32 %s, %s, %s, %s' % (v(vY), v(x0), v(x1), s(sM_H, 2)))
        A('v_cvt_pk_bf16_f32 %s, %s, %s' % (v(D), v(vX), v(vX)))
        A('v_cvt_pk_bf16_f32 %s, %s, %s' % (v(D + 1), v(x1), v(vX + 1)))
        A('v_cvt_pk_bf16_f32 %s, %s, %s' % (v(D + 2), v(vY), v(x0)))
        A('v_cvt_pk_bf16_f32 %s, %s, %s' % (v(D + 3), v(x0), v(x0)))
        wr_slot(vK3c, 512 * (3 - sl))
    D = vFrag + 12
    x0, x1 = vAcc + 14, vAcc + 15
    A('v_cndmask_b32 %s, %s, %s, %s' % (v(vX), v(x1), v(x0), s(sM_EV, 2)))
    A('v_cvt_pk_bf16_f32 %s, %s, %s' % (v(D), v(x1), v(x1)))
    A('v_cvt_pk_bf16_f32 %s, %s, %s' % (v(D + 1), v(x1), v(vX)))
    A('v_cvt_pk_bf16_f32 %s, %s, %s' % (v(D + 2), v(x0), v(x0)))
    A('v_mov_b32 %s, %s' % (v(D + 3), v(D + 2)))
    wr_slot(vK3c, 0)
    for i in range(4):
        A('v_mov_b32 %s, %s' % (v(vP + i), v(vP + 4 + i)))
    A('s_mov_b32 %s, %s' % (s(sLD0), s(sLD1)))
    A('s_mov_b32 %s, %s' % (s(sDS0), s(sDS1)))
    A('v_add_u32 %s, %d, %s' % (v(vK0c), 4 * KSTR, v(vK0c)))
    A('v_add_u32 %s, %d, %s' % (v(vK3c), 4 * KSTR, v(vK3c)))
    A('s_add_u32 %s, %s, 1' % (s(sCNT), s(sCNT)))
    A('s_cmp_lt_u32 %s, 2' % s(sCNT))
    A('s_cbranch_scc1 B_kgen_ch')
    A.endloop()
    A('s_lshl_b32 %s, %s, 13' % (s(sT1), s(S_WAVE)))
    A('v_add_u32 %s, %s, %s' % (v(vUr), s(sT1), v(vUr)))
    A('s_mul_i32 %s, %s, %d' % (s(sT1), s(S_WAVE), 8 * 144))
    A('s_add_u32 %s, %s, %d' % (s(sT1), s(sT1), UIMG))
    A('v_add_u32 %s, %s, %s' % (v(vUw), s(sT1), v(vUw)))
    A('v_add_u32 %s, %d, %s' % (v(vUz), UIMG, v(vUz)))
    A('s_mul_i32 %s, %s, %d' % (s(sT1), s(S_WAVE), UCH))
    A('s_add_u32 %s, %s, %d' % (s(sT1), s(sT1), UIMG))
    A('v_add_u32 %s, %s, %s' % (v(vCZ), s(sT1), v(vCZ)))
    A('v_add_u32 %s, %s, %s' % (v(vCB2), s(sT1), v(vCB2)))
    A('v_add_u32 %s, %s, %s' % (v(vCA), s(sKS), v(vCA)))
    A('s_lshl_b32 %s, %s, 6' % (s(sT1), s(S_WAVE)))
    A('s_add_u32 %s, %s, %s' % (s(sT1), s(sT1), s(sKS)))
    A('v_add_u32 %s, %s, %s' % (v(vYc), s(sT1), v(vYw)))
    for i in range(4):
        A('v_mov_b32 %s, 0' % v(vX + i))
    A('s_mov_b32 %s, 0' % s(sCNT))
    A('s_waitcnt vmcnt(0) lgkmcnt(0)')
    A('s_barrier')
    A('ds_write_b128 %s, %s' % (v(vUz), v(vX, 4)))
    A.loop()
    A.label('B_round')
    for i in range(8):
        for t in range(2):
            f = vFrag + 2 * ((2 * i + t) & 15)
            A('ds_read_b64_tr_b16 %s, %s offset:%d' % (v(f, 2), v(vUr), 1024 * i + (16 if t == 0 else 0)))
    for i in range(8):
        for t in range(2):
            f = vFrag + 2 * ((2 * i + t) & 15)
            A('ds_write_b64 %s, %s offset:%d' % (v(vUw), v(f, 2), 144 * i + UCP * t))
    for i in range(32):
        A('v_mov_b32 %s, 0' % v(vAcc + i))
    A('v_mov_b32 %s, %s' % (v(vCAc), v(vCA)))
    A('v_mov_b32 %s, %s' % (v(vCB2c), v(vCB2)))
    A('v_subrev_u32 %s, %d, %s' % (v(vCB1), 16 * 144, v(vCB2c)))
    A.barrier()

    def loadfr(buf, kt):
        f = vFrag + 16 * buf
        A('ds_read_b64 %s, %s offset:%d' % (v(f, 2), v(vCAc), 2048 + 32 * kt))
        A('ds_read_b64 %s, %s offset:%d' % (v(f + 2, 2), v(vCAc), 2048 + 32 * kt + 8))
        A('ds_read_b128 %s, %s offset:%d' % (v(f + 12, 4), v(vCB2c), 32 * kt))
        A('ds_read_b128 %s, %s offset:%d' % (v(f + 8, 4), v(vCB1), 32 * kt))
        A('ds_read_b64 %s, %s offset:%d' % (v(f + 4, 2), v(vCAc), 32 * kt))
        A('ds_read_b64 %s, %s offset:%d' % (v(f + 6, 2), v(vCAc), 32 * kt + 8))
    loadfr(0, 0)
    A('s_mov_b32 %s, 0' % s(sCNT2))
    A.loop()
    A.label('B_conv')
    for kt in range(4):
        buf = kt & 1
        if kt == 3:
            A('v_subrev_u32 %s, 128, %s' % (v(vCAc), v(vCAc)))
            A('v_subrev_u32 %s, 144, %s' % (v(vCB2c), v(vCB2c)))
            A('v_subrev_u32 %s, %d, %s' % (v(vCB1), 16 * 144, v(vCB2c)))
            A('v_max_i32 %s, %s, %s' % (v(vCB1), v(vCB1), v(vCZ)))
        loadfr(buf ^ 1, (kt + 1) & 3)
        f = vFrag + 16 * buf
        A('v_mfma_f32_32x32x16_bf16 %s, %s, %s, %s' % (v(vAcc + 16, 16), v(f, 4), v(f + 12, 4), v(vAcc + 16, 16)))
        A('v_mfma_f32_32x32x16_bf16 %s, %s, %s, %s' % (v(vAcc, 16), v(f, 4), v(f + 8, 4), v(vAcc, 16)))
        A('v_mfma_f32_32x32x16_bf16 %s, %s, %s, %s' % (v(vAcc + 16, 16), v(f + 4, 4), v(f + 8, 4), v(vAcc + 16, 16)))
    A('s_add_u32 %s, %s, 1' % (s(sCNT2), s(sCNT2)))
    A('s_cmp_lt_u32 %s, 16' % s(sCNT2))
    A('s_cbranch_scc1 B_conv')
    A.endloop()
    for nt in range(2):
        for q in range(4):
            b = vAcc + 16 * nt + 4 * q
            A('v_permlane16_swap_b32 %s, %s' % (v(b + 2), v(b)))
            A('v_permlane16_swap_b32 %s, %s' % (v(b + 3), v(b + 1)))
            d = vX + 2 * (q & 1)
            A('v_cvt_pk_bf16_f32 %s, %s, %s' % (v(d), v(b), v(b + 2)))
            A('v_cvt_pk_bf16_f32 %s, %s, %s' % (v(d + 1), v(b + 1), v(b + 3)))
            A('ds_write_b64 %s, %s offset:%d' % (v(vYc), v(d, 2), 2048 * nt + 32 * q))
    A('v_add_u32 %s, 8, %s' % (v(vUr), v(vUr)))
    A('v_add_u32 %s, %d, %s' % (v(vCA), 4 * KSTR, v(vCA)))
    A('v_add_u32 %s, %d, %s' % (v(vYc), 4 * KSTR, v(vYc)))
    A.barrier()
    A('s_add_u32 %s, %s, 1' % (s(sCNT), s(sCNT)))
    A('s_cmp_lt_u32 %s, 2' % s(sCNT))
    A('s_cbranch_scc1 B_round')
    A.endloop()
    A('s_lshl_b32 %s, %s, 10' % (s(sT1), s(S_WAVE)))
    A('s_add_u32 %s, %s, %d' % (s(sT1), s(sT1), KIMG))
    A('v_add_u32 %s, %s, %s' % (v(vFr), s(sT1), v(vFr)))
    A('s_mov_b32 %s, 2560' % s(sT1))
    A('v_mul_lo_u32 %s, v0, %s' % (v(vT), s(sT1)))
    A('s_mul_i32 %s, %s, %d' % (s(sT2), s(S_WAVE), 512 * 2560))
    A('s_lshl_b32 %s, %s, 4' % (s(sT3), s(S_CG)))
    A('s_add_u32 %s, %s, %s' % (s(sT2), s(sT2), s(sT3)))
    A('s_add_u32 %s, %s, 1280' % (s(sT2), s(sT2)))
    for i in range(8):
        f = vFrag + 4 * i
        A('ds_read_b64_tr_b16 %s, %s offset:%d' % (v(f, 2), v(vFr), 128 * i))
        A('ds_read_b64_tr_b16 %s, %s offset:%d' % (v(f + 2, 2), v(vFr), 128 * i + 4 * KSTR))
    for i in range(8):
        f = vFrag + 4 * i
        A('buffer_store_dwordx4 %s, %s, %s, %s offen' % (v(f, 4), v(vT), s(SO, 4), s(sT2)))
        if i < 7:
            A('s_add_u32 %s, %s, %d' % (s(sT2), s(sT2), 64 * 2560))
```

```python
import sys
from asmlib import *
from gen_b import *

KN = 'concat_heads__linear_kernel_hedgehog__ssm_conv_s4d__prompt_kernel'

def build(mode='full'):
    A = Asm()
    A('s_load_dwordx16 s[16:31], s[0:1], 0')
    A('s_load_dwordx8 s[32:39], s[0:1], 64')
    A('s_load_dwordx4 s[40:43], s[0:1], 96')
    A('s_cmp_ge_u32 s2, 256')
    A('s_cbranch_scc1 L_end')
    A('v_lshrrev_b32 v1, 6, v0')
    A('v_and_b32 v0, 63, v0')
    A('v_readfirstlane_b32 s4, v1')
    A('s_getpc_b64 s[6:7]')
    A.label('L_pc')
    A('s_add_u32 s6, s6, TABLES-L_pc')
    A('s_addc_u32 s7, s7, 0')
    A('s_and_b32 s8, s2, 7')
    A('s_lshr_b32 s9, s2, 3')
    A('s_waitcnt lgkmcnt(0)')
    A('s_cmp_lt_u32 s9, 16')
    A('s_cbranch_scc1 L_end')
    A('s_cmp_ge_u32 s9, 26')
    A('s_cbranch_scc1 L_end')
    A('s_mul_i32 s5, s8, 10')
    A('s_add_u32 s5, s5, s9')
    A('s_sub_u32 s5, s5, 16')
    gen_B(A, 6, 0)
    A.label('L_end')
    A('s_endpgm')
    body = finalize(A.ins)
    out = []
    out.append('; @launch grid=(256,1,1) block=(256,1,1) lds=163840')
    out.append('.amdgcn_target "amdgcn-amd-amdhsa--gfx950"')
    out.append('.text')
    out.append('.globl %s' % KN)
    out.append('.p2align 8')
    out.append('.type %s,@function' % KN)
    out.append('%s:' % KN)
    out += body
    out.append('.p2align 8')
    out.append('TABLES:')
    for t in b_table():
        out.append('.long ' + ', '.join(str(x) for x in t))
    out.append('''.section .rodata,"a"
.p2align 6
.amdhsa_kernel %s
  .amdhsa_next_free_vgpr 512
  .amdhsa_next_free_sgpr 102
  .amdhsa_accum_offset 256
  .amdhsa_group_segment_fixed_size 0
  .amdhsa_kernarg_size 112
  .amdhsa_user_sgpr_count 2
  .amdhsa_user_sgpr_kernarg_segment_ptr 1
  .amdhsa_system_sgpr_workgroup_id_x 1
.end_amdhsa_kernel''' % KN)
    return '\n'.join(out) + '\n'

if __name__ == '__main__':
    open(sys.argv[1], 'w').write(build())
```
